```python
import torch

def _softmax(x, axis=-1):
    return torch.softmax(x, dim=axis)
def _gelu(x):
    return torch.nn.functional.gelu(x, approximate="tanh")
def _silu(x):
    return torch.nn.functional.silu(x)
def _sigmoid(x):
    return torch.sigmoid(x)
def _layernorm(x, axis=-1, eps=1e-5):
    m = x.mean(dim=axis, keepdim=True)
    v = x.var(dim=axis, keepdim=True, unbiased=False)
    return (x - m) / torch.sqrt(v + eps)
def _scatter_add(tgt, idx, src, axis=0):
    return tgt.clone().index_add_(axis, idx, src)
def _segment_sum(src, seg, n):
    out = torch.zeros((n,) + src.shape[1:], dtype=src.dtype)
    return out.index_add_(0, seg, src)
def _pad(x, pw):
    flat = tuple(v for pair in reversed(pw) for v in pair)
    return torch.nn.functional.pad(x, flat)

kernel_name = 'concat_heads__mha_block_cached__gqa_block_cached__near_ridge'

def setup_inputs():

    _w = (lambda a: (lambda t: t.to(torch.bfloat16) if t.is_floating_point() else t)(torch.as_tensor(a)))
    def _A_setup():
        B, Sq, D = 8, 192, 640
        H, Sk, Dh = 32, 512, 192
        return {
            "x": _w((lambda *s: torch.randn(*s, dtype=torch.bfloat16) * 0.8)(B, Sq, D)),
            "k_cache": _w((lambda *s: torch.randn(*s, dtype=torch.bfloat16) * 0.8)(B, H, Sk, Dh)),
            "v_cache": _w((lambda *s: torch.randn(*s, dtype=torch.bfloat16) * 0.05)(B, H, Sk, Dh)),
            "wq": _w((lambda *s: torch.randn(*s, dtype=torch.bfloat16) * 0.8)(D, H * Dh) * (D ** -0.5)),
            "wo": _w((lambda *s: torch.randn(*s, dtype=torch.bfloat16) * 0.05)(H * Dh, D) * ((H * Dh) ** -0.5)),
        }
    _A_in = _A_setup()

    def _B_setup():
        B, Sq, D = 8, 192, 640
        Hq, Hkv, Sk, Dh = 32, 32, 512, 192
        assert Hq % Hkv == 0, (Hq, Hkv)
        return {
            "x": _w((lambda *s: torch.randn(*s, dtype=torch.bfloat16) * 0.8)(B, Sq, D)),
            "k_cache": _w((lambda *s: torch.randn(*s, dtype=torch.bfloat16) * 0.8)(B, Hkv, Sk, Dh)),
            "v_cache": _w((lambda *s: torch.randn(*s, dtype=torch.bfloat16) * 0.05)(B, Hkv, Sk, Dh)),
            "wq": _w((lambda *s: torch.randn(*s, dtype=torch.bfloat16) * 0.8)(D, Hq * Dh) * (D ** -0.5)),
            "wo": _w((lambda *s: torch.randn(*s, dtype=torch.bfloat16) * 0.05)(Hq * Dh, D) * ((Hq * Dh) ** -0.5)),
        }
    _B_in = _B_setup()

    return {
        "A_x": _A_in["x"],
        "A_k_cache": _A_in["k_cache"],
        "A_v_cache": _A_in["v_cache"],
        "A_wq": _A_in["wq"],
        "A_wo": _A_in["wo"],
        "B_x": _B_in["x"],
        "B_k_cache": _B_in["k_cache"],
        "B_v_cache": _B_in["v_cache"],
        "B_wq": _B_in["wq"],
        "B_wo": _B_in["wo"],
    }

def reference(A_x, A_k_cache, A_v_cache, A_wq, A_wo, B_x, B_k_cache, B_v_cache, B_wq, B_wo):
    def _A_ref(x, k_cache, v_cache, wq, wo):
        B, Sq, D = x.shape
        H, Dh = 32, 192
        q = (lambda x, *d: x.permute(*d))((x @ wq).reshape(B, Sq, H, Dh), 0, 2, 1, 3)
        scores = torch.einsum("bhqd,bhkd->bhqk", q, k_cache) * (Dh ** -0.5)
        p = _softmax(scores, axis=-1)
        o = torch.einsum("bhqk,bhkd->bhqd", p, v_cache)
        return (lambda x, *d: x.permute(*d))(o, 0, 2, 1, 3).reshape(B, Sq, H * Dh) @ wo

    def _B_ref(x, k_cache, v_cache, wq, wo):
        B, Sq, D = x.shape
        Hq, Dh = 32, 192
        Hkv = k_cache.shape[1]
        rep = Hq // Hkv
        q = (lambda x, *d: x.permute(*d))((x @ wq).reshape(B, Sq, Hq, Dh), 0, 2, 1, 3)
        k = (lambda x, n, axis: torch.repeat_interleave(x, n, dim=axis))(k_cache, rep, axis=1)
        v = (lambda x, n, axis: torch.repeat_interleave(x, n, dim=axis))(v_cache, rep, axis=1)
        scores = torch.einsum("bhqd,bhkd->bhqk", q, k) * (Dh ** -0.5)
        p = _softmax(scores, axis=-1)
        o = torch.einsum("bhqk,bhkd->bhqd", p, v)
        return (lambda x, *d: x.permute(*d))(o, 0, 2, 1, 3).reshape(B, Sq, Hq * Dh) @ wo

    a = _A_ref(A_x, A_k_cache, A_v_cache, A_wq, A_wo)
    b = _B_ref(B_x, B_k_cache, B_v_cache, B_wq, B_wo)
    return torch.concatenate([a, b], axis=-1)
```

```python
import re

def regs(prefix, start, n=1):
    return [f"{prefix}{start+i}" for i in range(n)]
def rt(prefix, start, n=1):
    return f"{prefix}{start}" if n == 1 else f"{prefix}[{start}:{start+n-1}]"

class Reg:
    def __init__(self, p, i, n=1): self.p, self.i, self.n = p, i, n
    def __str__(self): return rt(self.p, self.i, self.n)
    def set(self): return regs(self.p, self.i, self.n)
    def sub(self, off, n=1):
        assert off + n <= self.n, (self, off, n)
        return Reg(self.p, self.i + off, n)
    def __getitem__(self, k): return self.sub(k, 1)
def V(i, n=1): return Reg('v', i, n)
def A(i, n=1): return Reg('a', i, n)
def S(i, n=1): return Reg('s', i, n)

def _set(x):
    out = []
    if x is None: return out
    if isinstance(x, (list, tuple)):
        for y in x: out += _set(y)
        return out
    if isinstance(x, Reg): return x.set()
    if isinstance(x, str):
        if x in ('vcc', 'scc', 'm0', 'exec'): return [x]
        return []
    return []

class I:
    __slots__ = ('text', 'kind', 'rd', 'wr', 'cost', 'meta')
    def __init__(self, text, kind, rd=(), wr=(), cost=1, **meta):
        self.text, self.kind = text, kind
        self.rd, self.wr = set(_set(list(rd))), set(_set(list(wr)))
        self.cost, self.meta = cost, meta
    def __repr__(self): return self.text

def mfma(d, a, b, c):
    cz = (c == 0) if not isinstance(c, Reg) else False
    t = f"v_mfma_f32_16x16x32_bf16 {d}, {a}, {b}, {'0' if cz else c}"
    return I(t, 'mfma', rd=[a, b] + ([] if cz else [c]), wr=[d], cost=2, d=d, a=a, b=b, c=(None if cz else c))
def valu(op, d, *src, trans=False, extra_rd=(), extra_wr=(), cost=None):
    t = f"{op} {d}, " + ", ".join(str(s) for s in src)
    return I(t, 'trans' if trans else 'valu', rd=list(src) + list(extra_rd), wr=[d] + list(extra_wr), cost=cost or (2 if trans else 1))
def v_mov(d, s): return valu('v_mov_b32', d, s)
def v_exp(d, s): return valu('v_exp_f32', d, s, trans=True)
def v_rcp(d, s): return valu('v_rcp_f32', d, s, trans=True)
def v_cvt(d, a, b): return valu('v_cvt_pk_bf16_f32', d, a, b)
def v_mul(d, a, b): return valu('v_mul_f32', d, a, b)
def v_addu(d, a, b): return valu('v_add_u32', d, a, b)
def acc_rd(d, a): return valu('v_accvgpr_read_b32', d, a)
def acc_wr(a, s): return valu('v_accvgpr_write_b32', a, s)
def perm32(a, b): return I(f"v_permlane32_swap_b32 {a}, {b}", 'perm', rd=[a, b], wr=[a, b], cost=2)
def perm16(a, b): return I(f"v_permlane16_swap_b32 {a}, {b}", 'perm', rd=[a, b], wr=[a, b], cost=2)
def salu(op, d, *src, scc=True, rdscc=False):
    t = f"{op} {d}, " + ", ".join(str(s) for s in src)
    return I(t, 'salu', rd=list(src) + (['scc'] if rdscc else []), wr=[d] + (['scc'] if scc else []))
def s_mov(d, s): return salu('s_mov_b32', d, s, scc=False)
def s_add(d, a, b): return salu('s_add_u32', d, a, b)
def s_addc(d, a, b): return salu('s_addc_u32', d, a, b, rdscc=True)
def s_cmp(op, a, b): return I(f"s_cmp_{op} {a}, {b}", 'salu', rd=[a, b], wr=['scc'])
def s_csel(d, a, b): return salu('s_cselect_b32', d, a, b, scc=False, rdscc=True)
def ds_rd128(d, addr, off, **meta):
    assert 0 <= off < 65536, off
    return I(f"ds_read_b128 {d}, {addr} offset:{off}", 'dsr', rd=[addr], wr=[d], **meta)
def ds_rdtr(d, addr, off, **meta):
    assert 0 <= off < 65536, off
    return I(f"ds_read_b64_tr_b16 {d}, {addr} offset:{off}", 'dsr', rd=[addr], wr=[d], **meta)
def dma(voff, srd, soff, off, nt=False, cost=2, **meta):
    assert 0 <= off < 4096
    t = f"buffer_load_dwordx4 {voff}, {srd}, {soff} offen" + (f" offset:{off}" if off else "") + (" nt" if nt else "") + " lds"
    return I(t, 'dma', rd=[voff, srd, soff, 'm0'], wr=[], cost=cost, **meta)
def bload(d, voff, srd, soff, off=0, flags="", cost=2, **meta):
    t = f"buffer_load_dwordx{d.n} {d}, {voff}, {srd}, {soff} offen" + (f" offset:{off}" if off else "") + (" " + flags if flags else "")
    if d.n == 1: t = t.replace("dwordx1", "dword")
    return I(t, 'vld', rd=[voff, srd, soff], wr=[d], cost=cost, **meta)
def bstore(data, voff, srd, soff, off=0, flags="", cost=2, **meta):
    t = f"buffer_store_dwordx{data.n} {data}, {voff}, {srd}, {soff} offen" + (f" offset:{off}" if off else "") + (" " + flags if flags else "")
    if data.n == 1: t = t.replace("dwordx1", "dword")
    return I(t, 'vst', rd=[data, voff, srd, soff], wr=[], cost=cost, data=data, **meta)
def wait(vm=None, lgkm=None, need=None):
    i = I("", 'wait', vm=vm, lgkm=lgkm, need=need)
    set_wait_text(i)
    return i
def set_wait_text(i):
    vm, lgkm = i.meta['vm'], i.meta['lgkm']
    p = []
    if vm is not None: p.append(f"vmcnt({vm})")
    if lgkm is not None: p.append(f"lgkmcnt({lgkm})")
    i.text = "s_waitcnt " + " ".join(p)
def resolve_waits(trace):
    vmops = []
    for ins in trace:
        if ins.kind in ('dma', 'vld', 'vst'): vmops.append(ins)
        if ins.kind == 'wait' and ins.meta['vm'] == 'auto':
            last = -1
            for j, o in enumerate(vmops):
                if (o.meta.get('ring'), o.meta.get('elem')) in ins.meta['need']: last = j
            n = len(vmops) - 1 - last if last >= 0 else len(vmops)
            ins.meta['vm'] = min(n, 63); set_wait_text(ins)
def barrier(): return I("s_barrier", 'barrier')
def nop(n=0): return I(f"s_nop {n}", 'nop', n=n)
def label(name): return I(f"{name}:", 'label', cost=0, name=name)
def branch(op, target): return I(f"{op} {target}", 'branch', rd=(['scc'] if 'scc' in op else (['vcc'] if 'vcc' in op else [])), target=target)
def raw(text, kind='salu', rd=(), wr=(), cost=1, **m): return I(text, kind, rd=rd, wr=wr, cost=cost, **m)

class Bundle:
    def __init__(self, lst): self.lst = lst; self.cost = sum(i.cost for i in lst)
    def __repr__(self): return " | ".join(i.text for i in self.lst)
class Item:
    def __init__(self, ins, lo=0, hi=10**9, after=(), tag=None):
        if isinstance(ins, (list, tuple)): ins = Bundle(list(ins))
        self.ins, self.lo, self.hi, self.after = ins, lo, hi, list(after)
        self.pos = None; self.tag = tag

def weave(spine, pre, streams, cap=2, name="", tail_ok=True, verbose=False):
    n = len(spine)
    free = {g: cap for g in range(-1, n)}
    free[-1] = 0
    for idx, lst in pre.items():
        free[idx - 1] = free.get(idx - 1, 0) - sum(i.cost for i in lst)
    gaps = {g: [] for g in range(-1, n)}
    seq = 0
    over = 0
    for st in streams:
        prev = None
        for it in st:
            lo = it.lo
            if prev is not None: lo = max(lo, prev.pos)
            for (dep, dg) in it.after:
                assert dep.pos is not None, f"dependency not placed yet for {it.ins}"
                lo = max(lo, dep.pos + dg)
            hi = min(it.hi, n - 1)
            g = None
            for cand in range(lo, hi + 1):
                if free[cand] >= it.ins.cost: g = cand; break
            if g is None:
                if lo > hi:
                    raise Exception(f"{name}: window empty for {it.ins} lo={lo} hi={hi}")
                g = max(range(lo, hi + 1), key=lambda c: (free[c], -c))
                over += it.ins.cost - max(free[g], 0)
            free[g] -= it.ins.cost
            it.pos = g
            gaps[g].append((seq, it)); seq += 1
            prev = it
    out = []
    for g in range(-1, n):
        if g >= 0:
            out += pre.get(g, [])
            out.append(spine[g])
        for _, it in sorted(gaps[g], key=lambda x: x[0]):
            if isinstance(it.ins, Bundle): out += it.ins.lst
            else: out.append(it.ins)
    out += pre.get(n, [])
    tot_over = sum(-f for f in free.values() if f < 0)
    if verbose or tot_over:
        used = sum(cap - free[g] for g in range(0, n))
        print(f"[weave {name}] n={n} slots used {used}/{n*cap} overflow {tot_over}")
    return out

class Haz:
    def __init__(self):
        self.st = 0; self.lastw = {}; self.lastC = {}; self.laststore = {}
    def need(self, ins):
        k = ins.kind; st = self.st; worst = 0; why = None
        def req(d, r, wi, what):
            nonlocal worst, why
            if r - d > worst: worst = r - d; why = f"{what} {wi.text if wi else ''} -> {ins.text} dist {d} < {r}"
        for r in ins.rd:
            w = self.lastw.get(r)
            if not w: continue
            ws, wk, wi = w; d = st - ws; q = 0
            if wk in ('valu', 'trans', 'perm') and r[0] in 'va' and r != 'vcc':
                if k == 'mfma': q = 2
                if k == 'perm': q = 2
                if wk == 'trans' and k in ('valu', 'perm', 'mfma', 'vst', 'dsw'): q = max(q, 1)
                if ins.text.startswith('v_readfirstlane') or ins.text.startswith('v_readlane'): q = max(q, 1)
                if 'row_' in ins.text or 'quad_perm' in ins.text: q = max(q, 2)
            if wk in ('valu', 'trans') and (r[0] == 's' or r == 'vcc') and r != 'scc':
                if k in ('dma', 'vld', 'vst'): q = 5
                elif k in ('valu', 'trans', 'perm'): q = 2
                elif k in ('salu', 'branch', 'smem'): q = max(q, 1)
            if wk in ('valu',) and r == 'exec':
                if k == 'mfma': q = 4
                elif k == 'perm': q = 4
                elif k in ('valu','trans'): q = max(q, 2)
            if wk == 'mfma':
                if k == 'mfma':
                    c = ins.meta.get('c')
                    isC = c is not None and r in c.set()
                    isAB = r in ins.meta['a'].set() or r in ins.meta['b'].set()
                    if isAB: q = 8
                    elif isC: q = 0 if str(c) == str(wi.meta['d']) else 6
                else: q = 8
            if wk == 'salu' and r == 'm0' and k == 'dma': q = 1
            req(d, q, wi, f"RAW {r}")
        for r in ins.wr:
            w = self.lastw.get(r)
            if w:
                ws, wk, wi = w; d = st - ws
                if wk == 'mfma' and k != 'mfma': req(d, 8, wi, f"WAW {r}")
                if wk == 'mfma' and k == 'mfma':
                    c = ins.meta.get('c')
                    same = c is not None and str(c) == str(wi.meta['d']) and str(ins.meta['d']) == str(c)
                    if not same: req(d, 6, wi, f"mfmaWAW {r}")
            if k in ('valu', 'trans', 'perm'):
                if r in self.lastC: req(st - self.lastC[r], 3, None, f"srcC-WAR {r}")
                if r in self.laststore: req(st - self.laststore[r], 2, None, f"store-WAR {r}")
            if k in ('dsr', 'vld') and r in self.laststore: req(st - self.laststore[r], 1, None, f"store-WAR(ld) {r}")
        return worst, why
    def issue(self, ins):
        k = ins.kind
        if k == 'label': return
        inc = ins.meta['n'] + 1 if k == 'nop' else 1
        sa = self.st + inc
        for r in ins.wr:
            if k not in ('dsr', 'vld', 'smem'): self.lastw[r] = (sa, k, ins)
            else: self.lastw.pop(r, None)
        if k == 'mfma' and ins.meta.get('c') is not None:
            for r in ins.meta['c'].set(): self.lastC[r] = sa
        if k in ('vst', 'dsw') and ins.meta.get('data') is not None and ins.meta['data'].n >= 3 and k == 'vst':
            for r in ins.meta['data'].set(): self.laststore[r] = sa
        self.st = sa

def fix_hazards(lst, h=None):
    h = h or Haz(); out = []
    for ins in lst:
        if ins.kind != 'label':
            n, _ = h.need(ins)
            while n > 0:
                m = min(n, 16); x = nop(m - 1); out.append(x); h.issue(x); n -= m
        out.append(ins); h.issue(ins)
    return out

def check_trace(trace, name="", lds_check=True):
    errs = []
    h = Haz()
    lg = []; vm = []; pend = {}; smem_out = False
    fills = {}; reads_out = {}
    for idx, ins in enumerate(trace):
        k = ins.kind
        if k == 'label': continue
        for r in ins.rd | ins.wr:
            if r in pend:
                errs.append(f"{name}@{idx} {ins.text}: reg {r} pending from {pend[r][1].text}")
        n, why = h.need(ins)
        if n > 0: errs.append(f"{name}@{idx} HAZARD {why}")
        h.issue(ins)
        if k in ('dsr', 'dsw', 'smem'):
            lg.append(ins)
            if k == 'smem': smem_out = True
            for r in ins.wr: pend[r] = ('lg', ins)
            if k == 'dsr' and lds_check and 'ring' in ins.meta:
                key = (ins.meta['ring'], ins.meta['grp'])
                f = fills.get(key)
                if f is None or f['elem'] != ins.meta['elem'] or not f['visible']:
                    errs.append(f"{name}@{idx} LDS RAW: {ins.text} wants {key} elem {ins.meta['elem']} but state {f}")
                reads_out.setdefault(key, []).append([ins, 'inflight'])
            if len(lg) > 15: errs.append(f"{name}@{idx} lgkmcnt overflow ({len(lg)})")
        if k in ('dma', 'vld', 'vst'):
            vm.append(ins)
            for r in ins.wr: pend[r] = ('vm', ins)
            if len(vm) > 63: errs.append(f"{name}@{idx} vmcnt overflow")
            if k == 'dma' and lds_check and 'ring' in ins.meta:
                key = (ins.meta['ring'], ins.meta['grp'])
                if reads_out.get(key):
                    errs.append(f"{name}@{idx} LDS WAR: {ins.text} into {key} while reads not retired+barriered: {[e[0].text for e in reads_out[key][:2]]}")
                f = fills.get(key)
                if f is None or f['elem'] != ins.meta['elem']:
                    f = fills[key] = dict(elem=ins.meta['elem'], out=0, visible=False, n=0, expect=ins.meta.get('nexp', 6))
                f['out'] += 1; f['n'] += 1; f['visible'] = False
        if k == 'wait':
            v = ins.meta['vm']; l = ins.meta['lgkm']
            if v is not None:
                while len(vm) > v:
                    o = vm.pop(0)
                    for r in o.wr: pend.pop(r, None)
                    if o.kind == 'dma' and 'ring' in o.meta:
                        f = fills.get((o.meta['ring'], o.meta['grp']))
                        if f and f['elem'] == o.meta['elem']: f['out'] -= 1
            if l is not None:
                if smem_out and l != 0: errs.append(f"{name}@{idx} counted lgkmcnt with smem outstanding")
                while len(lg) > l:
                    o = lg.pop(0)
                    for r in o.wr: pend.pop(r, None)
                    if o.kind == 'dsr' and 'ring' in o.meta:
                        for e in reads_out.get((o.meta['ring'], o.meta['grp']), []):
                            if e[0] is o: e[1] = 'done'
                if l == 0: smem_out = False
        if k == 'barrier':
            for key, f in fills.items():
                if f['out'] == 0 and f['n'] >= f.get('expect', 6): f['visible'] = True
            for key in list(reads_out):
                reads_out[key] = [e for e in reads_out[key] if e[1] != 'done']
    return errs

def emit(lst):
    out = []
    for i in lst:
        out.append(i.text if i.kind == 'label' else "    " + i.text)
    return "\n".join(out)
```

```python
from core import *
import math

NT_KV = True
SCALE = math.log2(math.e) / math.sqrt(192.0)
import struct
def f2u(x): return struct.unpack('<I', struct.pack('<f', x))[0]

vTid = V(0); vLane = V(1)
vT = [V(i) for i in range(2, 8)]
vKV = [V(8), V(9), V(10)]
vAact = [V(11), V(12), V(13)]
vKrd = [V(14), V(15)]
vVrd = [V(16), V(17), V(18), V(19)]
vOoff = V(20)
vRinv = [V(21), V(22), V(23)]
vU = [V(i) for i in range(24, 28)]
QF0 = 28
def Qf(qb, c): return V(QF0 + (qb * 6 + c) * 4, 4)
S0 = 100
def Sb(buf, kb, qb): return V(S0 + buf * 48 + (kb * 3 + qb) * 4, 4)
P0 = 196
def Pb(buf, kc, qb): return V(P0 + buf * 24 + (kc * 3 + qb) * 4, 4)
def Acc(db, qb): return V(S0 + (db * 3 + qb) * 4, 4)
vXp = [V(244), V(245), V(246)]
vWp = [V(247), V(248), V(249)]
vPK0 = V(250); vPX = V(251)
def Ob(db, qb): return A((db * 3 + qb) * 4, 4)
def Lb(qb): return A(144 + 4 * qb, 4)
aOnes = A(156, 4)
def Kf(buf, c): return A(160 + buf * 24 + 4 * c, 4)
def Xf(buf, ks, qb): return A(160 + buf * 24 + (ks * 3 + qb) * 4, 4)
def Vf(gb, dbl, kc): return A(208 + gb * 16 + (dbl * 2 + kc) * 4, 4)

sW = S(3)
SRD_W = S(8, 4); SRD_X = S(12, 4); SRD_K = S(16, 4); SRD_V = S(20, 4); SRD_A = S(24, 4); SRD_O = S(28, 4)
sWo = S(32); sXo = S(33); sKo = S(34); sVo = S(35)
sAo = S(36); sAd2 = S(37); sAst = S(38)
sFA = S(39); sFB = S(40); sFAl = S(41); sFBl = S(42)
sRA = S(43); sRB = S(44); sDA = S(45); sDB = S(46)
sPos = S(47); sNeg = S(48)
sT1 = S(49); sT2 = S(50); sT3 = S(51); sT4 = S(52)
sCnt = S(53); sItem = S(54); sFlags = S(55); sMode = S(56); sScale = S(57)
sLo = S(58); sHi = S(59)
sBad = S(60, 2)
sPtr = 64
sKb = S(84, 2); sVb = S(86, 2); sWb = S(88, 2); sOb = S(90, 2)
sHead = S(92); sTmpP = S(94, 2)

GRP = 24576; RINGB = 73728; LDS_SPARE = 147456

def fill(ring, grp, elem, srd, pats, soff, d2, stride, sF, sFl, nt, lo, hi):
    m = dict(ring=ring, grp=grp, elem=elem)
    it = []
    a = Item(salu('s_mov_b32', 'm0', sF, scc=False), lo, hi); it.append(a)
    first = True
    for i in range(3):
        it.append(Item(dma(pats[i], srd, soff, 1024 * i, nt=nt, **m), lo, hi, after=[(a, 1)] if first else [])); first = False
    t = sT1 if ring == 'A' else sT2
    it.append(Item(s_add(t, soff, d2), lo, hi))
    b = Item(salu('s_add_u32', 'm0', sF, 3072), lo, hi); it.append(b)
    for i in range(3):
        it.append(Item(dma(pats[i], srd, t, 1024 * i, nt=nt, **m), lo, hi, after=[(b, 1)] if i == 0 else []))
    it.append(Item(s_add(soff, soff, stride), lo, hi))
    it.append(Item([s_cmp('eq_u32', sF, sFl), s_csel(sT3, sNeg, sPos)], lo, hi))
    it.append(Item(s_add(sF, sF, sT3), lo, hi))
    return it

def adv_read(sR, sD, lo, hi):
    return [Item([s_cmp('eq_u32', sR, 2 * GRP), s_csel(sD, sNeg, sPos)], lo, hi), Item(s_add(sR, sR, sD), lo, hi)]

def w_reads(G, ring, grp, elem, lo, hi, gb=None):
    gb = G % 2 if gb is None else gb
    it = []
    for dbl in range(2):
        db = 2 * G + dbl
        for kc in range(2):
            for t in range(2):
                it.append(Item(ds_rdtr(Vf(gb, dbl, kc).sub(2 * t, 2), vVrd[db % 4], kc * 12288 + t * 6144 + (db // 4) * 128,
                                       ring=ring, grp=grp, elem=elem), lo, hi))
    return it
def x_reads(buf, grp, elem, lo, hi):
    return [Item(ds_rd128(Xf(buf, ks, qb), vKrd[0], (ks * 3 + qb) * 1024, ring='B', grp=grp, elem=elem), lo, hi)
            for ks in range(2) for qb in range(3)]
def k_reads(kb, grp, elem, lo, hi, check=True):
    m = dict(ring='A', grp=grp, elem=elem) if check else {}
    return [Item(ds_rd128(Kf(kb % 2, c), vKrd[c % 2], kb * 6144 + (c // 2) * 128, **m), lo, hi) for c in range(6)]

def epilogue_items(lo, hi, nt_store=False):
    it = []
    T = [V(QF0 + 4 * i, 4) for i in range(6)]
    U = [V(QF0 + 24 + 4 * i, 4) for i in range(6)]
    for qb in range(3):
        it.append(Item(acc_rd(vU[qb], Lb(qb)[0]), lo, hi))
    for qb in range(3):
        it.append(Item([I(f"v_cmp_nge_f32 vcc, {vU[qb]}, {sLo}", 'valu', rd=[vU[qb], sLo], wr=['vcc']), ], lo, hi))
        it.append(Item(v_rcp(vRinv[qb], vU[qb]), lo, hi))
        it.append(Item(salu('s_or_b64', sBad, sBad, 'vcc'), lo, hi))
        it.append(Item([I(f"v_cmp_nle_f32 vcc, {vU[qb]}, {sHi}", 'valu', rd=[vU[qb], sHi], wr=['vcc']), ], lo, hi))
        it.append(Item(nop(0), lo, hi))
        it.append(Item(salu('s_or_b64', sBad, sBad, 'vcc'), lo, hi))
    n = 0; u = 0
    for c in range(6):
        for qb in range(3):
            Tq = T[n % 6]
            for h in range(2):
                db = 2 * c + h
                Uq = U[u % 6]; u += 1
                for r in range(4): it.append(Item(acc_rd(Uq[r], Ob(db, qb)[r]), lo, hi))
                for r in range(4): it.append(Item(v_mul(Uq[r], Uq[r], vRinv[qb]), lo, hi))
                it.append(Item(v_cvt(Tq[2 * h], Uq[0], Uq[1]), lo, hi))
                it.append(Item(v_cvt(Tq[2 * h + 1], Uq[2], Uq[3]), lo, hi))
            fr = c * 3 + qb
            if fr % 4 == 0: it.append(Item(s_mov(sT4, (fr // 4) * 4096), lo, hi))
            it.append(Item(bstore(Tq, vOoff, SRD_O, sT4, (fr % 4) * 1024), lo, hi))
            n += 1
    return it

def stage(s, par, first=False, fillA=None, fillB=None, tail='W', extra=None, zeroO=None):
    gA = s % 3; gB = s % 3
    spine = []
    for G in range(6):
        for dbl in range(2):
            for qb in range(3):
                for ks in range(2):
                    acc = Acc(2 * G + dbl, qb)
                    spine.append(mfma(acc, Vf(G % 2, dbl, ks), Xf(par, ks, qb), 0 if (first and ks == 0) else acc))
    pre = {0: [wait(lgkm=0)]}
    for G in range(1, 5): pre[12 * G] = [wait(lgkm=0)]
    need = [('A', s + 1), ('B', s + 1)] if tail == 'W' else [('A', s + 1)]
    pre[60] = [wait(vm='auto', lgkm=0, need=need), barrier()]
    streams = []
    rd = []
    for G in range(5): rd += w_reads(G + 1, 'A', gA, s, 12 * G, 12 * G + 9)
    streams.append(rd)
    advs = adv_read(sRA, sDA, 30, 50)
    if tail == 'W':
        va = [Item(v_addu(r, sDA, r), 58, 60) for r in vVrd] + [Item(v_addu(vKrd[0], sDA, vKrd[0]), 58, 60)]
        tl = w_reads(0, 'A', (s + 1) % 3, s + 1, 60, 70) + x_reads(1 - par, (s + 1) % 3, s + 1, 60, 70)
    else:
        va = [Item(v_addu(vKrd[0], GRP * (10 % 3), vPK0), 58, 60),
              Item(valu('v_xor_b32', vKrd[1], 64, vKrd[0]), 58, 60)]
        va += [Item(v_addu(r, RINGB + GRP * (10 % 3) - GRP * (9 % 3), r), 58, 71) for r in vVrd]
        tl = k_reads(0, (s + 1) % 3, s + 1, 60, 70)
    tl[0].after = [(va[0], 0), (va[1], 0)]
    streams.append(advs); streams.append(va[:5] if tail == 'W' else va[:2]); streams.append(tl)
    if tail != 'W': streams.append(va[2:])
    fl = []
    if fillA: fl += fill('A', (s + 2) % 3, lo=0, hi=56, **fillA)
    if fillB: fl += fill('B', (s + 2) % 3, lo=0, hi=56, **fillB)
    streams.append(fl)
    if extra: streams.append(extra)
    if zeroO: streams.append(zeroO)
    return weave(spine, pre, streams, name=f"stage{s}")

def wfill(elem): return dict(elem=elem, srd=SRD_W, pats=vWp, soff=sWo, d2=16 * 12288, stride=64 * 12288, sF=sFA, sFl=sFAl, nt=False)
def xfill(elem): return dict(elem=elem, srd=SRD_X, pats=vXp, soff=sXo, d2=64, stride=128, sF=sFB, sFl=sFBl, nt=False)
def kfill(elem): return dict(elem=elem, srd=SRD_K, pats=vKV, soff=sKo, d2=3072, stride=GRP, sF=sFA, sFl=sFAl, nt=NT_KV)
def vfill(elem): return dict(elem=elem, srd=SRD_V, pats=vKV, soff=sVo, d2=3072, stride=GRP, sF=sFB, sFl=sFBl, nt=NT_KV)
def afill(elem): return dict(elem=elem, srd=SRD_A, pats=vAact, soff=sAo, d2=sAd2, stride=sAst, sF=sFA, sFl=sFAl, nt=NT_KV)

def period(tau, fa=None, fb=None, tail='K', base=0, zeroO=None):
    qk = tau <= 7; sm = 1 <= tau <= 8; pv = tau >= 2
    sb = tau % 2
    spine = []; pre = {}; streams = []
    nA = 10 + tau; nB = 8 + tau
    gA = nA % 3; gB = nB % 3
    rd = []
    if qk:
        for kb in range(4):
            pre[len(spine)] = [wait(lgkm=0)]
            for qb in range(3):
                for c in range(6):
                    d = Sb(sb, kb, qb)
                    spine.append(mfma(d, Kf(kb % 2, c), Qf(qb, c), 0 if c == 0 else d))
        for kb in range(3): rd += k_reads(kb + 1, gA, base + nA, 18 * kb, 18 * kb + 12)
    p0 = len(spine)
    if pv:
        pb = (tau - 2) % 2
        if qk: rd += w_reads(0, 'B', gB, base + nB, 54, 68)
        for qb in range(3):
            for kc in range(2):
                spine.append(mfma(Lb(qb), aOnes, Pb(pb, kc, qb), Lb(qb)))
        g0 = len(spine)
        for G in range(6):
            pre[len(spine)] = [wait(lgkm=0)]
            for dbl in range(2):
                for qb in range(3):
                    for kc in range(2):
                        o = Ob(2 * G + dbl, qb)
                        spine.append(mfma(o, Vf(G % 2, dbl, kc), Pb(pb, kc, qb), o))
        pre_rd8 = []
        if not qk and tau == 8:
            pre_rd8 = w_reads(0, 'B', gB, base + nB, 0, 3)
        rd = pre_rd8 + rd
        for G in range(5): rd += w_reads(G + 1, 'B', gB, base + nB, g0 + 12 * G, g0 + 12 * G + 9)
        bpos = g0 + 60
    else:
        bpos = 54
    n = len(spine)
    need = []
    if tau + 1 <= 7: need.append(('A', base + nA + 1))
    if 2 <= tau + 1 <= 9: need.append(('B', base + nB + 1))
    if tau == 9: need = [('A', base + 18), ('B', base + 18)]
    pre[bpos] = [wait(vm='auto', lgkm=0, need=need), barrier()]
    streams.append(rd)
    va = []
    adv = []
    if qk:
        adv += adv_read(sRA, sDA, 0, 40)
        va += [Item(v_addu(r, sDA, r), 50, bpos) for r in vKrd]
    if pv:
        adv += adv_read(sRB, sDB, 0, 40)
    streams.append(adv)
    tl = []; vb = []
    if tail == 'K':
        tl = k_reads(0, (nA + 1) % 3, base + nA + 1, bpos, n - 2, check=(tau < 7))
    elif tail == 'V':
        vb = [Item(v_addu(r, sDB, r), bpos - 2, bpos) for r in vVrd]
        tl = w_reads(0, 'B', (nB + 1) % 3, base + nB + 1, bpos, n - 2)
    elif tail == 'W':
        vb = [Item(v_addu(r, (-(RINGB + GRP * (17 % 3))) & 0xffffffff, r), bpos - 2, bpos) for r in vVrd]
        vb += [Item(v_addu(vKrd[0], RINGB, vPX), bpos - 2, bpos)]
        tl = w_reads(0, 'A', 0, base + 18, bpos, n - 2) + x_reads(0, 0, base + 18, bpos, n - 2)
    if pv and tail == 'K':
        vb = [Item(v_addu(r, sDB, r), bpos - 2, n - 1) for r in vVrd]
    if va: streams.append(va)
    if vb: streams.append(vb)
    if tl:
        deps = [(x, 0) for x in (va if tail == 'K' else vb)]
        tl[0].after = deps
        streams.append(tl)
    fl = []
    if fa: fl += fill('A', (nA + 2) % 3, lo=0, hi=min(bpos - 4, 70), **fa)
    if fb: fl += fill('B', fb.pop('grp'), lo=0, hi=bpos - 4, **fb)
    streams.append(fl)
    if sm:
        rb = (tau - 1) % 2
        ex = []; cv = []
        nblk = 12
        span = (n - 8) / 48.0
        k = 0
        for kb in range(4):
            for qb in range(3):
                s4 = Sb(rb, kb, qb)
                e = []
                for r in range(4):
                    x = Item(v_exp(s4[r], s4[r]), int(k * span), n - 3); k += 1
                    ex.append(x); e.append(x)
                p = Pb(rb, kb // 2, qb)
                cv.append(Item(v_cvt(p[2 * (kb % 2)], s4[0], s4[1]), 0, n - 1, after=[(e[1], 1)]))
                cv.append(Item(v_cvt(p[2 * (kb % 2) + 1], s4[2], s4[3]), 0, n - 1, after=[(e[3], 1)]))
        streams.insert(2, ex); streams.append(cv)
    if zeroO: streams.append(zeroO)
    return weave(spine, pre, streams, name=f"tau{tau}")

def conv():
    out = []
    fr = [(qb, c) for qb in range(3) for c in range(6)]
    def mulcvt(qb, c):
        X, Y = Acc(2 * c, qb), Acc(2 * c + 1, qb); q = Qf(qb, c)
        o = [v_mul(X[r], sScale, X[r]) for r in range(4)] + [v_mul(Y[r], sScale, Y[r]) for r in range(4)]
        o += [v_cvt(q[0], X[0], X[1]), v_cvt(q[1], X[2], X[3]), v_cvt(q[2], Y[0], Y[1]), v_cvt(q[3], Y[2], Y[3])]
        return o
    def p32(qb, c): q = Qf(qb, c); return [perm32(q[0], q[2]), perm32(q[1], q[3])]
    def p16(qb, c): q = Qf(qb, c); return [perm16(q[0], q[2]), perm16(q[1], q[3])]
    out.append(nop(7))
    for i in range(len(fr) + 2):
        if i < len(fr): out += mulcvt(*fr[i])
        if 0 <= i - 2 < len(fr): out += p16(*fr[i - 2])
        if 0 <= i - 1 < len(fr):
            if i >= len(fr): out.append(nop(1))
            out += p32(*fr[i - 1])
    out.append(nop(1))
    return out
```

```python
from k1 import *

def prologue_setup():
    o = []
    a = o.append
    a(raw("s_load_dwordx16 s[64:79], s[0:1], 0", 'smem', wr=[S(64, 16)]))
    a(raw("s_load_dwordx4 s[80:83], s[0:1], 64", 'smem', wr=[S(80, 4)]))
    a(raw("s_load_dwordx2 s[94:95], s[0:1], 96", 'smem', wr=[S(94, 2)]))
    a(valu('v_and_b32', vLane, 63, vTid))
    a(valu('v_lshrrev_b32', vT[0], 6, vTid))
    a(I(f"v_readfirstlane_b32 {sW}, {vT[0]}", 'valu', rd=[vT[0]], wr=[sW]))
    sX, sJ, sBr, sB = S(4), S(5), S(6), S(7)
    a(salu('s_and_b32', sX, S(2), 7)); a(salu('s_lshr_b32', sJ, S(2), 3))
    a(salu('s_lshr_b32', sBr, sX, 2)); a(salu('s_and_b32', sT1, sX, 3))
    a(salu('s_and_b32', sB, sJ, 7)); a(salu('s_lshr_b32', sT2, sJ, 3))
    a(salu('s_lshl_b32', sT1, sT1, 3)); a(s_add(sHead, sT1, sT2))
    p, r, j, f, t = vT[0], vT[1], vT[2], vT[3], vT[4]
    a(s_mov(sT3, 2731))
    for i in range(3):
        a(v_addu(p, 64 * i, vLane))
        a(valu('v_mul_lo_u32', r, p, sT3)); a(valu('v_lshrrev_b32', r, 16, r))
        a(valu('v_mul_u32_u24', j, 24, r)); a(valu('v_sub_u32', j, p, j))
        a(valu('v_lshrrev_b32', f, 1, r)); a(valu('v_and_b32', f, 3, f)); a(valu('v_lshlrev_b32', f, 1, f))
        a(valu('v_xor_b32', j, j, f)); a(valu('v_lshlrev_b32', j, 4, j))
        if i: a(I(f"v_subrev_u32 {j}, {1024*i}, {j}", 'valu', rd=[j], wr=[j]))
        a(salu('s_lshl_b32', sT4, sW, 4)); a(v_addu(t, sT4, r)); a(valu('v_mul_u32_u24', t, 384, t)) if False else None
        a(s_mov(sT2, 384)); a(valu('v_mul_lo_u32', t, t, sT2)); a(v_addu(vKV[i], t, j))
        a(salu('s_lshr_b32', sT4, sW, 1)); a(salu('s_lshl_b32', sT4, sT4, 5))
        a(salu('s_and_b32', sT2, sW, 1)); a(salu('s_lshl_b32', sT2, sT2, 2)); a(s_add(sT4, sT4, sT2))
        a(valu('v_lshrrev_b32', t, 2, r)); a(valu('v_lshlrev_b32', t, 3, t)); a(valu('v_and_b32', f, 3, r))
        a(v_addu(t, t, f)); a(v_addu(t, sT4, t))
        a(s_mov(sT2, 12288)); a(valu('v_mul_lo_u32', t, t, sT2)); a(v_addu(vWp[i], t, j))
    q, g, aa, s = vT[0], vT[1], vT[2], vT[3]
    def sfun(dst, src, tmp):
        a(valu('v_lshrrev_b32', tmp, 1, src)); a(valu('v_xor_b32', dst, src, tmp)); a(valu('v_and_b32', dst, 1, dst))
        a(valu('v_lshlrev_b32', dst, 1, dst)); a(valu('v_or_b32', dst, dst, tmp))
    a(valu('v_lshrrev_b32', q, 2, vLane)); a(valu('v_and_b32', g, 3, vLane)); a(valu('v_lshrrev_b32', aa, 4, vLane))
    sfun(s, aa, t)
    a(valu('v_xor_b32', g, g, s)); a(valu('v_lshlrev_b32', g, 4, g))
    a(salu('s_mul_i32', sT4, sW, 48, scc=False)); a(v_addu(q, sT4, q))
    a(s_mov(sT2, 1280)); a(valu('v_mul_lo_u32', q, q, sT2)); a(v_addu(vXp[0], q, g))
    a(v_addu(vXp[1], 20480 - 1024, vXp[0])); a(v_addu(vXp[2], 20480 - 1024, vXp[1]))
    a(valu('v_and_b32', q, 15, vLane)); a(valu('v_lshrrev_b32', g, 4, vLane)); a(valu('v_lshrrev_b32', aa, 2, q))
    sfun(s, aa, t)
    a(valu('v_xor_b32', s, g, s)); a(valu('v_lshlrev_b32', t, 2, q)); a(v_addu(s, s, t)); a(valu('v_lshlrev_b32', s, 4, s))
    a(salu('s_mul_i32', sT4, sW, 6144, scc=False)); a(v_addu(vPX, sT4, s))
    a(valu('v_lshrrev_b32', f := vT[3], 1, q)); a(valu('v_and_b32', f, 3, f)); a(valu('v_lshlrev_b32', f, 1, f))
    a(valu('v_xor_b32', f, g, f)); a(valu('v_lshlrev_b32', f, 4, f))
    a(s_mov(sT2, 384)); a(valu('v_mul_lo_u32', t, q, sT2)); a(v_addu(vPK0, t, f))
    a(valu('v_lshrrev_b32', q, 2, vLane)); a(valu('v_lshrrev_b32', f, 1, q)); a(valu('v_and_b32', f, 3, f))
    a(valu('v_lshlrev_b32', f, 5, f)); a(valu('v_mul_lo_u32', t, q, sT2)); a(v_addu(t, t, f))
    a(valu('v_and_b32', g, 3, vLane)); a(valu('v_lshlrev_b32', g, 3, g)); a(v_addu(S_tr := vT[5], t, g))
    a(valu('v_lshlrev_b32', t, 4, vLane)); a(salu('s_mul_i32', sT4, sW, 32 * 18432, scc=False)); a(v_addu(vOoff, sT4, t))
    a(v_mov(t, 0x3f803f80))
    for i in range(4): a(acc_wr(aOnes[i], t))
    a(s_mov(sPos, GRP)); a(s_mov(sNeg, (-2 * GRP) & 0xffffffff)); a(s_mov(sScale, f2u(SCALE)))
    a(s_mov(sLo, f2u(2.0 ** -30))); a(s_mov(sHi, f2u(2.0 ** 30)))
    a(salu('s_mul_i32', sT4, sW, 6144, scc=False))
    a(s_add(sFAl, sT4, 2 * GRP)); a(s_add(sFBl, sT4, RINGB + 2 * GRP))
    a(s_mov(sFlags, 0)); a(s_mov(sMode, 0)); a(s_mov(sItem, 0))
    a(wait(lgkm=0))
    a(s_cmp('eq_u32', sBr, 0))
    sXp = S(96, 2)
    for d, pa, pb in ((sXp, 64, 74), (sKb, 66, 76), (sVb, 68, 78), (sWb, 70, 80)):
        a(s_csel(d[0], S(pa), S(pb))); a(s_csel(d[1], S(pa + 1), S(pb + 1)))
    a(salu('s_mul_i32', sT1, sB, 245760, scc=False))
    a(s_add(SRD_X[0], sXp[0], sT1)); a(s_addc(SRD_X[1], sXp[1], 0)); a(salu('s_and_b32', SRD_X[1], SRD_X[1], 0xffff))
    a(s_mov(SRD_X[3], 0x00020000))
    a(salu('s_mul_i32', sT1, sB, 32 * 196608, scc=False))
    a(s_add(sKb[0], sKb[0], sT1)); a(s_addc(sKb[1], sKb[1], 0))
    a(s_add(sVb[0], sVb[0], sT1)); a(s_addc(sVb[1], sVb[1], 0))
    a(salu('s_lshl_b32', sT1, sBr, 3)); a(s_add(sT1, sT1, sB)); a(salu('s_mul_i32', sT1, sT1, 32 * 73728, scc=False))
    a(s_add(sOb[0], S(94), sT1)); a(s_addc(sOb[1], S(95), 0))
    for srd in (SRD_W, SRD_K, SRD_V, SRD_A, SRD_O): a(s_mov(srd[3], 0x00020000))
    o = [x for x in o if x is not None]
    return o, vT[5]

def set_srd(srd, base, head, mul, nrec):
    return [salu('s_mul_i32', sT1, head, mul, scc=False),
            s_add(srd[0], base[0], sT1), s_addc(srd[1], base[1], 0), salu('s_and_b32', srd[1], srd[1], 0xffff),
            s_mov(srd[2], nrec)]
def set_W(head, enable=True):
    o = set_srd(SRD_W, sWb, head, 384, 0)
    o[-1] = salu('s_sub_u32', SRD_W[2], 640 * 12288, sT1)
    return o
def set_KV(head):
    return set_srd(SRD_K, sKb, head, 196608, 196608) + set_srd(SRD_V, sVb, head, 196608, 196608) + [s_mov(sKo, 0), s_mov(sVo, 0)]
def set_O(head): return set_srd(SRD_O, sOb, head, 18432, 3 * 32 * 18432 + 18432)

def flat(items):
    out = []
    for it in items:
        out += it.ins.lst if isinstance(it.ins, Bundle) else [it.ins]
    return out

def cold_start(vTR, base):
    o = []
    o += set_W(sHead) + set_KV(sHead)
    o += [s_mov(SRD_X[2], 245760), s_mov(SRD_O[2], 0), s_mov(SRD_O[0], sOb[0]), salu('s_and_b32', SRD_O[1], sOb[1], 0xffff)]
    o += [s_mov(sWo, 0), s_mov(sXo, 0), s_mov(sRA, 0), s_mov(sRB, 0)]
    o += [salu('s_mul_i32', sFA, sW, 6144, scc=False), s_add(sFB, sFA, RINGB)]
    for g in range(2):
        o += flat(fill('A', g, lo=0, hi=0, **wfill(base + g))) if True else []
        o += flat(fill('B', g, lo=0, hi=0, **xfill(base + g)))
    for x in range(4): o.append(valu('v_xor_b32', vVrd[x], 32 * x, vTR))
    o.append(v_addu(vKrd[0], RINGB, vPX))
    o += [wait(vm='auto', need=[('A', base), ('B', base)]), barrier()]
    o += flat(w_reads(0, 'A', 0, base, 0, 0)) + flat(x_reads(0, 0, base, 0, 0))
    return o

def zero_items(lo, hi, a0, a1):
    return [Item(acc_wr(A(i), 0), lo, hi) for i in range(a0, a1)]

def qe8(base):
    ep = epilogue_items(0, 71)
    n = len(ep); per = -(-n // 8)
    blocks = []
    for s in range(8):
        part = ep[s * per:(s + 1) * per]
        for it in part: it.pos = None
        blocks.append(stage(base + s, s % 2, first=(s == 0), fillA=wfill(base + s + 2), fillB=xfill(base + s + 2), extra=part))
    return blocks
def qt(base):
    b8 = stage(base + 8, 0, fillA=kfill(base + 10), fillB=vfill(base + 10), zeroO=zero_items(0, 71, 0, 40))
    b9 = stage(base + 9, 1, fillA=kfill(base + 11), fillB=vfill(base + 11), tail='K', zeroO=zero_items(0, 71, 40, 80))
    return [b8, b9]
def t01(base):
    t0 = period(0, fa=kfill(base + 12), base=base, zeroO=zero_items(0, 71, 80, 156))
    t1 = period(1, fa=kfill(base + 13), base=base)
    return [t0, t1]
def tl_iter(it, base):
    out = []
    for tau in (2 + 2 * it, 3 + 2 * it):
        fb = vfill(base + 10 + tau); fb['grp'] = (10 + tau) % 3
        out.append(period(tau, fa=afill(base + 12 + tau), fb=fb, base=base))
    return out
def t89(base):
    fb = xfill(base + 18); fb['grp'] = 0
    t8 = period(8, fb=fb, tail='V', base=base)
    fb = xfill(base + 19); fb['grp'] = 1
    t9 = period(9, fb=fb, tail='W', base=base)
    return [t8, t9]

def tl_entry():
    return [s_mov(SRD_A[0], SRD_K[0]), s_mov(SRD_A[1], SRD_K[1]), s_mov(SRD_A[2], SRD_K[2]),
            s_mov(sAo, sKo), s_mov(sAd2, 3072), s_mov(sAst, GRP), s_mov(sCnt, 3), s_mov(sRB, GRP)] + [v_mov(vAact[i], vKV[i]) for i in range(3)]
def tl_switch():
    o = [s_add(sT2, sHead, 4)] + set_W(sT2)
    o += [s_cmp('eq_u32', sItem, 0), s_csel(SRD_W[2], SRD_W[2], 0)]
    o += [s_mov(SRD_A[0], SRD_W[0]), s_mov(SRD_A[1], SRD_W[1]), s_mov(SRD_A[2], SRD_W[2]),
          s_mov(sAo, 0), s_mov(sAd2, 16 * 12288), s_mov(sAst, 64 * 12288)] + [v_mov(vAact[i], vWp[i]) for i in range(3)]
    return o
def t8_entry():
    return [s_mov(sWo, 2 * 64 * 12288), s_mov(sXo, 0), s_cmp('eq_u32', sItem, 0), s_csel(SRD_X[2], SRD_X[2], 0)]
def next_item():
    return set_O(sHead) + [s_add(sHead, sHead, 4)] + set_KV(sHead) + [s_mov(sItem, 1)]

def flags_update(bit):
    return [I(f"s_cmp_lg_u64 {sBad}, 0", 'salu', rd=[sBad], wr=['scc']), s_csel(sT1, bit, 0), salu('s_or_b32', sFlags, sFlags, sT1),
            salu('s_mov_b64', sBad, 0, scc=False)]

def build_k1(name):
    setup, vTR = prologue_setup()
    setup = fix_hazards(setup)
    body = []
    tr = []
    def both(lst): body.extend(lst); tr.extend(lst)
    head = [raw("s_cmp_ge_u32 s2, 256", wr=['scc']), branch('s_cbranch_scc1', 'K1_end')]
    both(head); both(setup)
    vTRk = V(252)
    both([v_mov(vTRk, vTR), salu('s_mov_b64', sBad, 0, scc=False)])
    cs = fix_hazards(cold_start(vTRk, 0))
    both([label('K1_cold')]); both(cs)
    inst = {}
    for item in range(2):
        base = 18 * item
        blocks = dict(qe=qe8(base), qt=qt(base), cv=fix_hazards(conv()), t01=t01(base),
                      tl=[tl_iter(i, base) for i in range(3)], t89=t89(base))
        inst[item] = blocks
    fe = fix_hazards([nop(7)] + flat(epilogue_items(0, 0)))
    def seq(lsts):
        o = []
        for l in lsts: o += l
        return o
    glue_qe_end = {0: [salu('s_mov_b64', sBad, 0, scc=False)], 1: None}
    e_tl = fix_hazards(tl_entry()); sw = fix_hazards(tl_switch()); e8 = fix_hazards(t8_entry()); nx = fix_hazards(next_item())
    loopctl = [salu('s_sub_u32', sCnt, sCnt, 1), s_cmp('eq_u32', sCnt, 1), branch('s_cbranch_scc1', 'K1_tlsw'),
               s_cmp('lg_u32', sCnt, 0), branch('s_cbranch_scc1', 'K1_tl')]
    post_qe = [s_cmp('eq_u32', sItem, 0), branch('s_cbranch_scc1', 'K1_pq0')] + flags_update(1) + set_O(sHead) + \
              [branch('s_branch', 'K1_pq1'), label('K1_pq0'), salu('s_mov_b64', sBad, 0, scc=False)] + set_O(sHead) + [label('K1_pq1')]
    post_qe_tr = flags_update(1) + set_O(sHead)
    for item in range(2):
        b = inst[item]
        tr += seq(b['qe']) + post_qe_tr + seq(b['qt']) + b['cv'] + seq(b['t01']) + e_tl
        for i in range(3):
            tr += seq(b['tl'][i]) + loopctl[:3]
            if i == 1: tr += sw
            else: tr += loopctl[3:]
        tr += e8 + seq(b['t89'])
        if item == 0: tr += nx
    tr += fe
    resolve_waits(tr)
    def unify(lists):
        n = len(lists[0])
        for l in lists: assert len(l) == n
        for k in range(n):
            if lists[0][k].kind == 'wait' and lists[0][k].meta['vm'] is not None:
                m = min(l[k].meta['vm'] for l in lists)
                for l in lists: l[k].meta['vm'] = m; set_wait_text(l[k])
        for l in lists[1:]:
            for k in range(n):
                assert l[k].text == lists[0][k].text, (l[k].text, lists[0][k].text)
    for key in ('qe', 'qt', 't01', 't89'):
        unify([seq(inst[i][key]) for i in range(2)])
    unify([seq(inst[it]['tl'][i]) for it in range(2) for i in range(3)])
    errs = check_trace(tr, name="K1")
    for e in errs[:40]: print(e)
    print("K1 check errors:", len(errs))
    b = inst[0]
    body += [label('K1_item')] + seq(b['qe']) + post_qe + seq(b['qt']) + b['cv'] + seq(b['t01']) + e_tl
    body += [label('K1_tl')] + seq(b['tl'][0]) + loopctl + e8 + seq(b['t89'])
    body += [s_cmp('eq_u32', sItem, 1), branch('s_cbranch_scc1', 'K1_fin')] + nx + [branch('s_branch', 'K1_item')]
    body += [label('K1_tlsw')] + sw + [branch('s_branch', 'K1_tl')]
    body += [label('K1_fin')] + fe + flags_update(2) + [wait(vm=0)]
    body += [label('K1_end'), raw('s_endpgm', 'branch')]
    return body, len(errs)

if __name__ == "__main__":
    body, ne = build_k1("k1")
    txt = emit(body)
    open('k1_body.s', 'w').write(txt)
    print(len(body), "instructions")
```

```python
from core import *

G2 = 20480
vLane = V(1); vT = [V(i) for i in range(2, 8)]
vWp = [V(8 + i) for i in range(5)]
vRE = [V(14), V(15)]; vRO = [V(16), V(17)]
vOl = V(18)
vPs = V(19)
def Of(slot, ks, qb): return V(32 + slot * 24 + (ks * 3 + qb) * 4, 4)
def Ac(nb, qb): return A((nb * 3 + qb) * 4, 4)
def Wf(gb, nbl, ks): return A(120 + gb * 16 + (nbl * 2 + ks) * 4, 4)
sW = S(3)
SRD_W = S(8, 4); SRD_O = S(12, 4); SRD_P = S(16, 4)
sWo = S(20); sOo = S(21); sF = S(22); sT1 = S(23); sT2 = S(24); sT3 = S(25); sCnt = S(26); sT4 = S(27)
PART_OFF = 64 << 20

def loads(stage, lo, hi):
    g = stage % 4
    m = dict(ring='W', grp=g, elem=stage, nexp=5)
    it = []
    a = Item(salu('s_add_u32', 'm0', sF, g * G2), lo, hi); it.append(a)
    for i in range(4):
        it.append(Item(dma(vWp[i], SRD_W, sWo, 1024 * i, **m), lo, hi, after=[(a, 1)] if i == 0 else []))
    b = Item(salu('s_add_u32', 'm0', sF, g * G2 + 4096), lo, hi); it.append(b)
    it.append(Item(dma(vWp[4], SRD_W, sWo, 0, **m), lo, hi, after=[(b, 1)]))
    it.append(Item(s_add(sWo, sWo, 64 * 1280), lo, hi))
    for ks in range(2):
        for qb in range(3):
            fr = ks * 3 + qb
            if fr == 4: it.append(Item(s_add(sT1, sOo, 4096), lo, hi))
            it.append(Item(bload(Of(g, ks, qb), vOl, SRD_O, sOo if fr < 4 else sT1, (fr % 4) * 1024, ring='O', elem=stage), lo, hi))
    it.append(Item(s_add(sOo, sOo, 6144), lo, hi))
    return it

def w_reads(G, gb, stage, lo, hi):
    g = stage % 4
    it = []
    for nbl in range(2):
        nb = 2 * G + nbl
        base = (vRE if nb % 2 == 0 else vRO)[1 if g == 3 else 0]
        goff = 0 if g == 3 else g * G2
        for ks in range(2):
            for t in range(2):
                it.append(Item(ds_rdtr(Wf(gb, nbl, ks).sub(2 * t, 2), base, goff + ks * 10240 + t * 5120 + nb * 32,
                                       ring='W', grp=g, elem=stage), lo, hi))
    return it

def stage2(s, first=False, last_fill=True, tail=True):
    spine = []; pre = {}
    gpar = (5 * s) % 2
    for G in range(5):
        pre[len(spine)] = [wait(lgkm=0)]
        for nbl in range(2):
            for qb in range(3):
                for ks in range(2):
                    acc = Ac(2 * G + nbl, qb)
                    spine.append(mfma(acc, Wf((gpar + G) % 2, nbl, ks), Of(s % 4, ks, qb), 0 if (first and ks == 0) else acc))
    pre[0] = [wait(lgkm=0)]
    pre[48] = [wait(vm='auto', lgkm=0, need=[('W', s + 1), ('O', s + 1)]), barrier()]
    rd = []
    for G in range(4): rd += w_reads(G + 1, (gpar + G + 1) % 2, s, 12 * G, 12 * G + 9)
    streams = [rd]
    if tail: streams.append(w_reads(0, (gpar + 5) % 2, s + 1, 48, 58))
    if last_fill: streams.append(loads(s + 3, 0, 44))
    return weave(spine, pre, streams, name=f"k2s{s}")

def flat(items):
    out = []
    for it in items: out += it.ins.lst if isinstance(it.ins, Bundle) else [it.ins]
    return out

def build_k2():
    o = []; a = o.append
    a(raw("s_cmp_ge_u32 s2, 256", wr=['scc'])); a(branch('s_cbranch_scc1', 'K2_end'))
    a(raw("s_load_dwordx2 s[64:65], s[0:1], 32", 'smem', wr=[S(64, 2)]))
    a(raw("s_load_dwordx2 s[66:67], s[0:1], 72", 'smem', wr=[S(66, 2)]))
    a(raw("s_load_dwordx2 s[68:69], s[0:1], 96", 'smem', wr=[S(68, 2)]))
    a(valu('v_and_b32', vLane, 63, V(0))); a(valu('v_lshrrev_b32', vT[0], 6, V(0)))
    a(I(f"v_readfirstlane_b32 {sW}, {vT[0]}", 'valu', rd=[vT[0]], wr=[sW]))
    sX, sJ, sBr, sB, sKg, sNq = S(4), S(5), S(6), S(7), S(28), S(29)
    a(salu('s_and_b32', sX, S(2), 7)); a(salu('s_lshr_b32', sJ, S(2), 3)); a(salu('s_lshr_b32', sBr, sX, 2))
    a(salu('s_and_b32', sKg, sX, 3)); a(salu('s_and_b32', sB, sJ, 7)); a(salu('s_lshr_b32', sNq, sJ, 3))
    p, r, j, f, t = vT[0], vT[1], vT[2], vT[3], vT[4]
    a(s_mov(sT3, 3277))
    a(s_mov(sT2, 1280))
    for i in range(5):
        a(valu('v_add_u32', p, 64 * i, vLane))
        a(valu('v_mul_lo_u32', r, p, sT3)); a(valu('v_lshrrev_b32', r, 16, r))
        a(valu('v_mul_u32_u24', j, 20, r)); a(valu('v_sub_u32', j, p, j))
        a(valu('v_lshrrev_b32', f, 2, r)); a(valu('v_and_b32', f, 1, f)); a(valu('v_lshlrev_b32', f, 1, f))
        a(valu('v_xor_b32', j, j, f)); a(valu('v_lshlrev_b32', j, 4, j))
        if 0 < i < 4: a(I(f"v_subrev_u32 {j}, {1024*i}, {j}", 'valu', rd=[j], wr=[j]))
        a(salu('s_lshl_b32', sT4, sW, 4)); a(valu('v_add_u32', t, sT4, r)); a(valu('v_mul_lo_u32', t, t, sT2))
        a(valu('v_add_u32', vWp[i], t, j))
    a(valu('v_lshrrev_b32', r, 2, vLane)); a(s_mov(sT2, 320)); a(valu('v_mul_lo_u32', t, r, sT2))
    a(valu('v_and_b32', j, 3, vLane)); a(valu('v_lshlrev_b32', j, 3, j)); a(valu('v_add_u32', t, t, j))
    a(valu('v_lshrrev_b32', f, 4, vLane)); a(valu('v_and_b32', f, 1, f)); a(valu('v_lshlrev_b32', f, 5, f))
    a(valu('v_add_u32', vRE[0], t, f)); a(valu('v_sub_u32', vRO[0], t, f))
    a(valu('v_add_u32', vRE[1], 3 * G2, vRE[0])); a(valu('v_add_u32', vRO[1], 3 * G2, vRO[0]))
    a(valu('v_lshlrev_b32', t, 4, vLane)); a(salu('s_mul_i32', sT4, sW, 32 * 18432, scc=False)); a(valu('v_add_u32', vOl, sT4, t))
    a(salu('s_mul_i32', sT4, sW, 30720, scc=False)); a(valu('v_add_u32', vPs, sT4, t))
    a(salu('s_mul_i32', sF, sW, 5120, scc=False))
    a(wait(lgkm=0))
    a(s_cmp('eq_u32', sBr, 0)); a(s_csel(S(64), S(64), S(66))); a(s_csel(S(65), S(65), S(67)))
    a(salu('s_mul_i32', sT1, sKg, 1536 * 1280, scc=False)); a(salu('s_mul_i32', sT2, sNq, 320, scc=False)); a(s_add(sT1, sT1, sT2))
    a(s_add(SRD_W[0], S(64), sT1)); a(s_addc(SRD_W[1], S(65), 0)); a(salu('s_and_b32', SRD_W[1], SRD_W[1], 0xffff))
    a(salu('s_sub_u32', SRD_W[2], 6144 * 1280, sT1)); a(s_mov(SRD_W[3], 0x00020000))
    a(salu('s_lshl_b32', sT1, sBr, 3)); a(s_add(sT1, sT1, sB)); a(salu('s_mul_i32', sT2, sT1, 32 * 73728, scc=False))
    a(salu('s_mul_i32', sT3, sKg, 8 * 18432, scc=False)); a(s_add(sT2, sT2, sT3))
    a(s_add(SRD_O[0], S(68), sT2)); a(s_addc(SRD_O[1], S(69), 0)); a(salu('s_and_b32', SRD_O[1], SRD_O[1], 0xffff))
    a(s_mov(SRD_O[2], 3 * 32 * 18432 + 8 * 18432)); a(s_mov(SRD_O[3], 0x00020000))
    a(salu('s_lshl_b32', sT1, sT1, 2)); a(s_add(sT1, sT1, sNq)); a(salu('s_lshl_b32', sT1, sT1, 2)); a(s_add(sT1, sT1, sKg))
    a(salu('s_mul_i32', sT1, sT1, 122880, scc=False)); a(s_add(sT1, sT1, PART_OFF))
    a(s_add(SRD_P[0], S(68), sT1)); a(s_addc(SRD_P[1], S(69), 0)); a(salu('s_and_b32', SRD_P[1], SRD_P[1], 0xffff))
    a(s_mov(SRD_P[2], 122880)); a(s_mov(SRD_P[3], 0x00020000))
    a(s_mov(sWo, 0)); a(s_mov(sOo, 0))
    pro = fix_hazards(o)
    st = []
    for s in range(3): st += flat(loads(s, 0, 0))
    st += [wait(vm='auto', need=[('W', 0), ('O', 0)]), barrier()] + flat(w_reads(0, 0, 0, 0, 0))
    st = fix_hazards(st)
    inst = [stage2(s, first=(s == 0), last_fill=(s + 3 < 24), tail=(s < 23)) for s in range(24)]
    ep = [nop(7)]
    for blk in range(30):
        nb, qb = blk // 3, blk % 3
        if blk % 4 == 0: ep.append(s_mov(sT1, (blk // 4) * 4096))
        ep.append(bstore(Ac(nb, qb), vPs, SRD_P, sT1, (blk % 4) * 1024))
    ep.append(wait(vm=0))
    ep = fix_hazards(ep)
    tr = pro + st + sum(inst, []) + ep
    resolve_waits(tr)
    def unify(lists):
        n = len(lists[0])
        for l in lists: assert len(l) == n, (len(l), n)
        for k in range(n):
            if lists[0][k].kind == 'wait' and lists[0][k].meta['vm'] is not None:
                m = min(l[k].meta['vm'] for l in lists)
                for l in lists: l[k].meta['vm'] = m; set_wait_text(l[k])
        for l in lists[1:]:
            for k in range(n): assert l[k].text == lists[0][k].text, (l[k].text, lists[0][k].text)
    its = [sum(inst[4 * i:4 * i + 4], []) for i in range(1, 5)]
    unify(its)
    errs = check_trace(tr, name="K2")
    for e in errs[:30]: print(e)
    print("K2 check errors:", len(errs))
    body = pro + st + sum(inst[0:4], []) + [s_mov(sCnt, 4), label('K2_loop')] + its[0]
    body += [salu('s_sub_u32', sCnt, sCnt, 1), s_cmp('lg_u32', sCnt, 0), branch('s_cbranch_scc1', 'K2_loop')]
    body += sum(inst[20:24], []) + ep + [label('K2_end'), raw('s_endpgm', 'branch')]
    return body, len(errs)

def build_k3():
    o = []; a = o.append
    a(raw("s_cmp_ge_u32 s2, 1920", wr=['scc'])); a(branch('s_cbranch_scc1', 'K3_end'))
    a(raw("s_load_dwordx2 s[64:65], s[0:1], 80", 'smem', wr=[S(64, 2)]))
    a(raw("s_load_dwordx2 s[68:69], s[0:1], 96", 'smem', wr=[S(68, 2)]))
    vl = V(1); t = [V(i) for i in range(2, 8)]
    a(valu('v_and_b32', vl, 63, V(0))); a(valu('v_lshrrev_b32', t[0], 6, V(0)))
    a(I(f"v_readfirstlane_b32 s3, {t[0]}", 'valu', rd=[t[0]], wr=[S(3)]))
    a(salu('s_lshl_b32', S(4), S(2), 2)); a(s_add(S(4), S(4), S(3)))
    a(salu('s_mul_hi_u32', S(5), S(4), 35791395, scc=False))
    a(salu('s_mul_i32', S(6), S(5), 120, scc=False)); a(salu('s_sub_u32', S(6), S(4), S(6)))
    a(salu('s_mul_hi_u32', S(7), S(6), 143165577, scc=False))
    a(salu('s_mul_i32', S(20), S(7), 30, scc=False)); a(salu('s_sub_u32', S(20), S(6), S(20)))
    a(salu('s_mul_hi_u32', S(21), S(20), 1431655766, scc=False))
    a(salu('s_mul_i32', S(22), S(21), 3, scc=False)); a(salu('s_sub_u32', S(22), S(20), S(22)))
    a(salu('s_and_b32', S(23), S(5), 3)); a(salu('s_lshr_b32', S(24), S(5), 2))
    a(salu('s_and_b32', S(25), S(24), 7)); a(salu('s_lshr_b32', S(26), S(24), 3))
    a(wait(lgkm=0))
    a(salu('s_mul_i32', S(27), S(5), 4 * 122880, scc=False)); a(salu('s_mul_i32', S(28), S(7), 30720, scc=False)); a(s_add(S(27), S(27), S(28)))
    a(salu('s_lshl_b32', S(28), S(20), 10)); a(s_add(S(27), S(27), S(28))); a(s_add(S(27), S(27), PART_OFF))
    a(s_add(S(8), S(68), S(27))); a(s_addc(S(9), S(69), 0)); a(salu('s_and_b32', S(9), S(9), 0xffff))
    a(s_mov(S(10), 3 * 122880 + 1024)); a(s_mov(S(11), 0x00020000))
    a(valu('v_lshlrev_b32', t[1], 4, vl))
    for kg in range(4):
        a(s_mov(S(30 + kg), kg * 122880))
        a(bload(V(8 + 4 * kg, 4), t[1], S(8, 4), S(30 + kg), 0))
    a(salu('s_mul_i32', S(36), S(25), 192, scc=False)); a(salu('s_mul_i32', S(37), S(7), 48, scc=False)); a(s_add(S(36), S(36), S(37)))
    a(salu('s_lshl_b32', S(37), S(22), 4)); a(s_add(S(36), S(36), S(37)))
    a(salu('s_mul_i32', S(38), S(26), 640, scc=False)); a(salu('s_mul_i32', S(37), S(23), 160, scc=False)); a(s_add(S(38), S(38), S(37)))
    a(salu('s_lshl_b32', S(37), S(21), 4)); a(s_add(S(38), S(38), S(37)))
    a(valu('v_and_b32', t[2], 15, vl)); a(valu('v_add_u32', t[2], S(36), t[2])); a(s_mov(S(37), 2560)); a(valu('v_mul_lo_u32', t[2], t[2], S(37)))
    a(valu('v_lshrrev_b32', t[3], 4, vl)); a(valu('v_lshlrev_b32', t[3], 2, t[3])); a(valu('v_add_u32', t[3], S(38), t[3]))
    a(valu('v_lshlrev_b32', t[3], 1, t[3])); a(valu('v_add_u32', t[2], t[2], t[3]))
    a(s_mov(S(12), S(64))); a(salu('s_and_b32', S(13), S(65), 0xffff)); a(s_mov(S(14), 8 * 192 * 1280 * 2)); a(s_mov(S(15), 0x00020000))
    a(wait(vm=0))
    for r in range(4):
        a(valu('v_add_f32', V(8 + r), V(8 + r), V(12 + r))); a(valu('v_add_f32', V(16 + r), V(16 + r), V(20 + r)))
    for r in range(4): a(valu('v_add_f32', V(8 + r), V(8 + r), V(16 + r)))
    a(v_cvt(V(24), V(8), V(9))); a(v_cvt(V(25), V(10), V(11)))
    a(bstore(V(24, 2), t[2], S(12, 4), 0))
    a(wait(vm=0))
    o = fix_hazards(o)
    errs = check_trace(o, name="K3")
    for e in errs: print(e)
    return o + [label('K3_end'), raw('s_endpgm', 'branch')], len(errs)
```

```python
import sys
from core import *
import k1top, k2
NAME = "concat_heads__mha_block_cached__gqa_block_cached__near_ridge"
HDR = open('cdna_kernels/' + NAME + '.s.ref').read().split('; Override launch')[0]
def kd(name, vgpr, acc, sgpr=102):
    return f""".amdhsa_kernel {name}
  .amdhsa_next_free_vgpr {vgpr}
  .amdhsa_next_free_sgpr {sgpr}
  .amdhsa_accum_offset {acc}
  .amdhsa_group_segment_fixed_size 0
  .amdhsa_kernarg_size 104
  .amdhsa_user_sgpr_count 2
  .amdhsa_user_sgpr_kernarg_segment_ptr 1
  .amdhsa_system_sgpr_workgroup_id_x 1
.end_amdhsa_kernel
"""
def kern(name, body):
    return f".globl {name}\n.p2align 8\n.type {name},@function\n{name}:\n" + emit(body) + "\n"
def main(out):
    b1, e1 = k1top.build_k1("k1"); b2, e2 = k2.build_k2(); b3, e3 = k2.build_k3()
    assert e1 == 0 and e2 == 0 and e3 == 0
    t = HDR
    t += "; @launch kernel=attn_kernel grid=(256,1,1) block=(256,1,1) lds=163840\n"
    t += "; @launch kernel=oproj_kernel grid=(256,1,1) block=(256,1,1) lds=81920\n"
    t += "; @launch kernel=reduce_kernel grid=(1920,1,1) block=(256,1,1) lds=0\n"
    t += '.amdgcn_target "amdgcn-amd-amdhsa--gfx950"\n.text\n'
    t += kern("attn_kernel", b1) + kern("oproj_kernel", b2) + kern("reduce_kernel", b3)
    t += '.section .rodata,"a"\n.p2align 6\n' + kd("attn_kernel", 512, 256) + ".p2align 6\n" + kd("oproj_kernel", 288, 128) + ".p2align 6\n" + kd("reduce_kernel", 32, 32, 80)
    open(out, 'w').write(t)
    print("wrote", out, len(t), "bytes")
if __name__ == "__main__":
    main(sys.argv[1] if len(sys.argv) > 1 else 'cdna_kernels/' + NAME + '.s')
```
